```python
import torch

def _softmax(x, axis=-1):
    return torch.softmax(x, dim=axis)
def _gelu(x):
    return torch.nn.functional.gelu(x, approximate="tanh")
def _silu(x):
    return torch.nn.functional.silu(x)
def _sigmoid(x):
    return torch.sigmoid(x)
def _layernorm(x, axis=-1, eps=1e-5):
    m = x.mean(dim=axis, keepdim=True)
    v = x.var(dim=axis, keepdim=True, unbiased=False)
    return (x - m) / torch.sqrt(v + eps)
def _scatter_add(tgt, idx, src, axis=0):
    return tgt.clone().index_add_(axis, idx, src)
def _segment_sum(src, seg, n):
    out = torch.zeros((n,) + src.shape[1:], dtype=src.dtype)
    return out.index_add_(0, seg, src)
def _pad(x, pw):
    flat = tuple(v for pair in reversed(pw) for v in pair)
    return torch.nn.functional.pad(x, flat)

kernel_name = 'sequential_preLN__sliding_local_dilated__mixer_channel_mlp__prompt'

def setup_inputs():

    _w = (lambda a: (lambda t: t.to(torch.bfloat16) if t.is_floating_point() else t)(torch.as_tensor(a)))
    def _A_setup():
        B, S, D = 1, 2048, 512
        return {
            "x": _w((lambda *s: torch.randn(*s, dtype=torch.bfloat16) * 0.05)(B, S, D)),
            "wqkv": _w((lambda *s: torch.randn(*s, dtype=torch.bfloat16) * 0.05)(D, 3 * D)),
            "wo": _w((lambda *s: torch.randn(*s, dtype=torch.bfloat16) * 0.05)(D, D)),
        }
    _A_in = _A_setup()

    def _B_setup():
        B, S, D, F = 1, 2048, 512, 1792
        return {
            "x": _w((lambda *s: torch.randn(*s, dtype=torch.bfloat16) * 0.05)(B, S, D)),
            "w1": _w((lambda *s: torch.randn(*s, dtype=torch.bfloat16) * 3.2)(D, F) * (D ** -0.5)),
            "b1": _w((lambda *s: torch.randn(*s, dtype=torch.bfloat16) * 1.6)(F)),
            "w2": _w((lambda *s: torch.randn(*s, dtype=torch.bfloat16) * 0.2)(F, D) * (F ** -0.5)),
            "b2": _w((lambda *s: torch.randn(*s, dtype=torch.bfloat16) * 0.2)(D)),
        }
    _B_in = _B_setup()

    return {
        "A_x": _A_in["x"],
        "A_wqkv": _A_in["wqkv"],
        "A_wo": _A_in["wo"],
        "B_x": _B_in["x"],
        "B_w1": _B_in["w1"],
        "B_b1": _B_in["b1"],
        "B_w2": _B_in["w2"],
        "B_b2": _B_in["b2"],
    }

def reference(A_x, A_wqkv, A_wo, B_x, B_w1, B_b1, B_w2, B_b2):
    def _A_ref(x, wqkv, wo):
        B, S, D = x.shape
        H = 32; Dh = D // H
        W, dil = 8, 2
        qkv = (lambda x, *d: x.permute(*d))((x @ wqkv).reshape(B, S, 3, H, Dh), 2, 0, 3, 1, 4)
        q, k, v = qkv[0], qkv[1], qkv[2]
        scale = Dh ** -0.5
        pos = torch.arange(S)
        off = torch.arange(W) * dil
        idx = pos[:, None] - off[None, :]
        mask = idx >= 0
        idx_c = torch.where(mask, idx, 0).reshape(-1)
        kg = k[:, :, idx_c, :].reshape(B, H, S, W, Dh)
        vg = v[:, :, idx_c, :].reshape(B, H, S, W, Dh)
        logits = torch.einsum("bhsd,bhswd->bhsw", q, kg) * scale
        logits = torch.where(mask[None, None, :, :], logits, -1e9)
        attn = _softmax(logits, axis=-1)
        o = torch.einsum("bhsw,bhswd->bhsd", attn, vg)
        return (lambda x, *d: x.permute(*d))(o, 0, 2, 1, 3).reshape(B, S, D) @ wo

    def _B_ref(x, w1, b1, w2, b2):
        y = _layernorm(x, axis=-1)
        h = _gelu(torch.einsum("bsd,df->bsf", y, w1) + b1)
        return torch.einsum("bsf,fd->bsd", h, w2) + b2

    x = A_x
    h = x + _A_ref(_layernorm(x, axis=-1), A_wqkv, A_wo)
    h2 = h + _B_ref(_layernorm(h, axis=-1), B_w1, B_b1, B_w2, B_b2)
    return h2
```

```python
import struct


class R:
    def __init__(self, kind, idx, n=1):
        self.kind, self.idx, self.n = kind, idx, n

    def __str__(self):
        if self.n == 1:
            return f"{self.kind}{self.idx}"
        return f"{self.kind}[{self.idx}:{self.idx + self.n - 1}]"

    __repr__ = __str__

    def regs(self):
        return {(self.kind, self.idx + i) for i in range(self.n)}

    def __getitem__(self, i):
        if isinstance(i, slice):
            a = i.start or 0
            b = self.n if i.stop is None else i.stop
            return R(self.kind, self.idx + a, b - a)
        assert 0 <= i < self.n
        return R(self.kind, self.idx + i, 1)


class Special:
    def __init__(self, name, regs):
        self.name, self._regs = name, regs

    def __str__(self):
        return self.name

    def regs(self):
        return set(self._regs)


VCC = Special("vcc", {("x", "vcc")})
EXEC = Special("exec", {("x", "exec")})
M0 = Special("m0", {("x", "m0")})


def V(i, n=1):
    return R("v", i, n)


def S(i, n=1):
    return R("s", i, n)


def f32(x):
    return "0x%08x" % struct.unpack("<I", struct.pack("<f", x))[0]


def regs_of(ops):
    out = set()
    for o in ops:
        if isinstance(o, (R, Special)):
            out |= o.regs()
        elif isinstance(o, Neg):
            out |= o.r.regs()
    return out


class Neg:
    def __init__(self, r):
        self.r = r

    def __str__(self):
        return "-" + str(self.r)


TRANS = ("v_exp_f32", "v_log_f32", "v_rcp_f32", "v_rsq_f32", "v_sqrt_f32", "v_sin_f32", "v_cos_f32")


class Ins:
    __slots__ = ("kind", "w", "r", "passes", "A", "B", "C", "D", "slots", "flags", "text", "data")


class Asm:
    def __init__(self):
        self.lines = []
        self.hist = []
        self.nv = 0
        self.ns = 0

    def raw(self, text):
        self.lines.append(text)

    def comment(self, t):
        self.lines.append("    ; " + t)

    def label(self, name):
        self.fence()
        self.lines.append(name + ":")

    def fence(self):
        need = 0
        dist = 0
        for p in reversed(self.hist):
            if p.kind == "mfma":
                need = max(need, {2: 5, 4: 8, 8: 12, 16: 20}[p.passes] - dist)
            elif p.kind in ("valu", "trans"):
                need = max(need, 5 - dist)
            elif p.kind == "vmem_store":
                need = max(need, 2 - dist)
            elif p.kind == "salu":
                need = max(need, 1 - dist)
            dist += p.slots
            if dist >= 24:
                break
        self._nops(need)
        self.hist = []

    def _nops(self, n):
        while n > 0:
            k = min(n, 16)
            self.lines.append(f"    s_nop {k - 1}")
            i = Ins()
            i.kind = "nop"
            i.w = set()
            i.r = set()
            i.slots = k
            i.flags = ()
            self.hist.append(i)
            n -= k

    def _required(self, p, c):
        need = 0
        if p.kind == "mfma":
            big = {2: 5, 4: 8, 8: 12, 16: 20}[p.passes]
            if c.kind == "mfma":
                if c.C & p.D:
                    if c.C == p.D and c.passes == p.passes:
                        need = max(need, 2 if p.passes == 2 else 0)
                    else:
                        need = max(need, {2: 4, 4: 6, 8: 10, 16: 18}[p.passes])
                if (c.A | c.B) & p.D:
                    need = max(need, big)
                if c.D & p.D and not (c.C == p.D and c.D == p.D):
                    need = max(need, big)
            elif c.kind in ("valu", "trans", "vmem_load", "vmem_store", "dma", "ds_read", "ds_write"):
                if (c.r | c.w) & p.D:
                    need = max(need, big)
                if c.kind in ("valu", "trans") and c.w & p.C:
                    need = max(need, {2: 1, 4: 3, 8: 7, 16: 15}[p.passes])
        elif p.kind in ("valu", "trans"):
            vw = {x for x in p.w if x[0] == "v"}
            sw = {x for x in p.w if x[0] != "v"}
            if c.kind == "mfma":
                if c.r & vw:
                    need = max(need, 2)
                if ("x", "exec") in sw:
                    need = max(need, 4)
            if c.kind in ("valu", "trans"):
                if p.kind == "trans" and c.r & vw:
                    need = max(need, 1)
                if "dpp" in c.flags and c.r & vw:
                    need = max(need, 2)
                if "permlane" in c.flags and (c.r | c.w) & vw:
                    need = max(need, 2)
                if "readlane" in c.flags and c.r & vw:
                    need = max(need, 1)
                if c.r & sw:
                    need = max(need, 4 if "readlane" in c.flags else 2)
                if ("x", "exec") in sw:
                    need = max(need, 5)
                if "opsel" in p.flags and (c.r | c.w) & vw:
                    need = max(need, 1)
            if c.kind in ("vmem_load", "vmem_store", "dma") and c.r & sw:
                need = max(need, 5)
            if c.kind == "salu" and c.r & sw:
                need = max(need, 1)
        elif p.kind == "salu":
            if ("x", "m0") in p.w and c.kind == "dma":
                need = max(need, 1)
        elif p.kind == "vmem_store":
            if "wide" in p.flags and c.w & p.data:
                need = max(need, 2)
        return need

    def _push(self, c, text):
        need = 0
        dist = 0
        for p in reversed(self.hist):
            if p.kind != "nop":
                need = max(need, self._required(p, c) - dist)
            dist += p.slots
            if dist >= 24:
                break
        self._nops(need)
        c.slots = 1
        self.hist.append(c)
        if len(self.hist) > 64:
            self.hist = self.hist[-40:]
        self.lines.append("    " + text)
        for k, i in c.w | c.r:
            if k == "v":
                self.nv = max(self.nv, i + 1)
            elif k == "s":
                self.ns = max(self.ns, i + 1)

    def _mk(self, kind, w, r, flags=()):
        c = Ins()
        c.kind = kind
        c.w = regs_of(w)
        c.r = regs_of(r)
        c.flags = flags
        c.passes = 0
        return c

    def valu(self, op, dst, *srcs, mods="", extra_w=(), extra_r=(), flags=()):
        dsts = dst if isinstance(dst, (list, tuple)) else [dst]
        kind = "trans" if op in TRANS else "valu"
        fl = tuple(flags)
        if "dpp" in op or "row_" in mods or "quad_perm" in mods:
            fl += ("dpp",)
        if "permlane" in op:
            fl += ("permlane",)
        if "readlane" in op or "readfirstlane" in op:
            fl += ("readlane",)
        rd = list(srcs) + list(extra_r)
        if op.startswith("v_fmac") or op.startswith("v_dot2c") or "permlane" in op:
            rd += dsts
        wr = list(dsts) + list(extra_w)
        if "permlane" in op:
            wr += list(srcs)
        c = self._mk(kind, wr, rd, fl)
        self._push(c, f"{op} " + ", ".join(str(x) for x in list(dsts) + list(srcs)) + (" " + mods if mods else ""))

    def salu(self, op, dst, *srcs, extra_w=(), extra_r=()):
        dsts = [] if dst is None else (dst if isinstance(dst, (list, tuple)) else [dst])
        c = self._mk("salu", list(dsts) + list(extra_w), list(srcs) + list(extra_r))
        self._push(c, f"{op} " + ", ".join(str(x) for x in list(dsts) + list(srcs)))

    def mfma(self, op, D, A, B, C):
        passes = 8 if "32x32" in op else 4
        c = self._mk("mfma", [D], [A, B, C])
        c.passes = passes
        c.A, c.B, c.D = A.regs(), B.regs(), D.regs()
        c.C = C.regs() if isinstance(C, R) else set()
        self._push(c, f"{op} {D}, {A}, {B}, {C}")

    def smem(self, op, dst, base, off):
        c = self._mk("smem", [dst], [base])
        self._push(c, f"{op} {dst}, {base}, {off}")

    def bload(self, op, dst, voff, srd, soff, offset=0, mods=""):
        c = self._mk("vmem_load", [dst], [voff, srd, soff])
        o = f" offset:{offset}" if offset else ""
        self._push(c, f"{op} {dst}, {voff}, {srd}, {soff} offen{o}{mods}")

    def bstore(self, op, data, voff, srd, soff, offset=0, mods=""):
        c = self._mk("vmem_store", [], [data, voff, srd, soff], ("wide",) if data.n >= 3 else ())
        c.data = data.regs()
        o = f" offset:{offset}" if offset else ""
        self._push(c, f"{op} {data}, {voff}, {srd}, {soff} offen{o}{mods}")

    def dma(self, voff, srd, soff, op="buffer_load_dwordx4", mods=""):
        c = self._mk("dma", [], [voff, srd, soff, M0])
        self._push(c, f"{op} {voff}, {srd}, {soff} offen{mods} lds")

    def ds_read(self, op, dst, addr, offset=0):
        assert 0 <= offset < 65536, offset
        c = self._mk("ds_read", [dst], [addr])
        o = f" offset:{offset}" if offset else ""
        self._push(c, f"{op} {dst}, {addr}{o}")

    def ds_write(self, op, addr, data, offset=0):
        assert 0 <= offset < 65536, offset
        c = self._mk("ds_write", [], [addr, data])
        o = f" offset:{offset}" if offset else ""
        self._push(c, f"{op} {addr}, {data}{o}")

    def wait(self, vm=None, lgkm=None):
        t = "s_waitcnt"
        if vm is not None:
            assert 0 <= vm <= 63
            t += f" vmcnt({vm})"
        if lgkm is not None:
            assert 0 <= lgkm <= 15
            t += f" lgkmcnt({lgkm})"
        c = self._mk("wait", [], [])
        self._push(c, t)

    def barrier(self):
        c = self._mk("barrier", [], [])
        self._push(c, "s_barrier")

    def misc(self, text):
        c = self._mk("misc", [], [])
        self._push(c, text)

    def branch(self, op, label):
        self.fence()
        self.lines.append(f"    {op} {label}")

    def endpgm(self):
        self.lines.append("    s_endpgm")
        self.hist = []


class VAlloc:
    def __init__(self, start=0, limit=256):
        self.n = start
        self.limit = limit

    def get(self, n=1, align=1):
        if n >= 2:
            align = max(align, 2)
        self.n = (self.n + align - 1) // align * align
        r = V(self.n, n)
        self.n += n
        assert self.n <= self.limit, "out of vgprs"
        return r
```

```python
import math
import os
import sys

sys.path.insert(0, os.path.dirname(os.path.abspath(__file__)))
from asmlib import *

NAME = "sequential_preLN__sliding_local_dilated__mixer_channel_mlp__prompt"
WS_O, WS_H, WS_H1 = 0, 2 << 20, 4 << 20
MF32 = "v_mfma_f32_16x16x32_bf16"
MF16 = "v_mfma_f32_16x16x16_bf16"
LOG2E = 1.4426950408889634
NEG = -1e30

P_X, P_WQKV, P_WO, P_BX, P_W1, P_B1, P_W2, P_B2 = [S(16 + 2 * i, 2) for i in range(8)]
P_OUT, P_WS = S(32, 2), S(34, 2)
SRD_A, SRD_W, SRD_X1, SRD_X2, SRD_O = [S(36 + 4 * i, 4) for i in range(5)]
S_WAVE = S(3)


def build_srd(a, srd, ptr, size, off=0):
    if off:
        a.salu("s_add_u32", srd[0], ptr[0], off)
        a.salu("s_addc_u32", srd[1], ptr[1], 0)
        a.salu("s_and_b32", srd[1], srd[1], 0xFFFF)
    else:
        a.salu("s_mov_b32", srd[0], ptr[0])
        a.salu("s_and_b32", srd[1], ptr[1], 0xFFFF)
    a.salu("s_mov_b32", srd[2], size)
    a.salu("s_mov_b32", srd[3], 0x20000)


def prologue(a, name, srds):
    a.raw(f".globl {name}\n.p2align 8\n.type {name},@function\n{name}:")
    a.salu("s_cmp_ge_u32", None, S(2), 256)
    a.branch("s_cbranch_scc1", f"L_{name}_end")
    a.smem("s_load_dwordx16", S(16, 16), S(0, 2), 0)
    a.smem("s_load_dwordx2", S(32, 2), S(0, 2), 64)
    a.smem("s_load_dwordx2", S(34, 2), S(0, 2), 80)
    a.valu("v_lshrrev_b32", V(2), 6, V(0))
    a.valu("v_and_b32", V(1), 63, V(0))
    a.valu("v_readfirstlane_b32", S_WAVE, V(2))
    a.wait(lgkm=0)
    for srd, ptr, size, off in srds:
        build_srd(a, srd, ptr, size, off)


def epilogue_end(a, name):
    a.label(f"L_{name}_end")
    a.endpgm()


def kd(name, nv, ns):
    nv = max(nv, 8)
    acc = (nv + 3) // 4 * 4
    return f""".section .rodata,"a"
.p2align 6
.amdhsa_kernel {name}
  .amdhsa_next_free_vgpr {nv}
  .amdhsa_next_free_sgpr {max(ns, 16)}
  .amdhsa_accum_offset {acc}
  .amdhsa_group_segment_fixed_size 0
  .amdhsa_kernarg_size 88
  .amdhsa_user_sgpr_count 2
  .amdhsa_user_sgpr_kernarg_segment_ptr 1
  .amdhsa_system_sgpr_workgroup_id_x 1
.end_amdhsa_kernel
.text
"""


def bf16r(a, x, tmp):
    a.valu("v_cvt_pk_bf16_f32", tmp, x, x)
    a.valu("v_lshlrev_b32", x, 16, tmp)


def loader_loop(a, n_stages, NS, per_stage, issue):
    depth = min(NS - 1, n_stages) if NS < n_stages else n_stages
    for st in range(depth):
        issue(st)
    issued = depth
    for st in range(n_stages):
        outstanding_after = (issued - st - 1) * per_stage
        a.wait(vm=min(outstanding_after, 63))
        a.barrier()
        if issued < n_stages:
            issue(issued)
            issued += 1


def k1():
    name = NAME + "_k1_kernel"
    a = Asm()
    prologue(a, name, [(SRD_A, P_X, 2048 * 1024, 0), (SRD_W, P_WQKV, 512 * 3072, 0), (SRD_O, P_WS, 2048 * 1024, WS_O)])
    STG = 34816
    WOFF = 10240
    NS = 4
    STATS = NS * STG
    s_rb, s_cb, s_t = S(56), S(57), S(58)
    a.salu("s_and_b32", s_t, S(2), 7)
    a.salu("s_lshr_b32", s_rb, s_t, 1)
    a.salu("s_lshl_b32", s_rb, s_rb, 3)
    a.salu("s_lshr_b32", S(59), S(2), 3)
    a.salu("s_and_b32", S(60), S(59), 7)
    a.salu("s_add_u32", s_rb, s_rb, S(60))
    a.salu("s_and_b32", s_cb, s_t, 1)
    a.salu("s_lshl_b32", s_cb, s_cb, 2)
    a.salu("s_lshr_b32", S(59), S(59), 3)
    a.salu("s_add_u32", s_cb, s_cb, S(59))
    a.salu("s_cmp_ge_u32", None, S_WAVE, 4)
    a.branch("s_cbranch_scc1", f"L_{name}_loader")

    lane = V(1)
    va = VAlloc(3)
    l15, g, tmp, tmp2 = va.get(), va.get(), va.get(), va.get()
    a.valu("v_and_b32", l15, 15, lane)
    a.valu("v_lshrrev_b32", g, 4, lane)
    a_act = [va.get(), va.get()]
    a_st = [va.get(), va.get()]
    a_w = va.get()
    l7 = va.get()
    a.valu("v_and_b32", l7, 7, lane)
    for ks in range(2):
        a.valu("v_add_u32", tmp, 4 * ks, g)
        a.valu("v_xor_b32", tmp, tmp, l7)
        a.valu("v_lshlrev_b32", tmp, 4, tmp)
        a.valu("v_lshl_add_u32", a_act[ks], l15, 7, tmp)
        a.salu("s_lshl_b32", s_t, S_WAVE, 11)
        a.valu("v_add_u32", a_st[ks], s_t, a_act[ks])
    rp, c = va.get(), va.get()
    a.valu("v_lshrrev_b32", rp, 2, l15)
    a.valu("v_and_b32", c, 3, l15)
    a.valu("v_lshrrev_b32", tmp, 1, c)
    a.salu("s_lshl_b32", s_t, S_WAVE, 1)
    a.valu("v_add_u32", tmp, s_t, tmp)
    a.valu("v_and_b32", tmp2, 2, rp)
    a.valu("v_xor_b32", tmp, tmp, tmp2)
    a.valu("v_and_b32", tmp2, 1, g)
    a.valu("v_lshlrev_b32", tmp2, 2, tmp2)
    a.valu("v_xor_b32", tmp, tmp, tmp2)
    a.valu("v_lshlrev_b32", tmp, 4, tmp)
    a.valu("v_and_b32", tmp2, 1, c)
    a.valu("v_lshl_add_u32", tmp, tmp2, 3, tmp)
    a.valu("v_lshl_add_u32", tmp2, g, 3, rp)
    a.valu("v_lshl_add_u32", tmp, tmp2, 7, tmp)
    a.valu("v_add_u32", a_w, WOFF, tmp)
    cur_act = [va.get(), va.get()]
    cur_st = [va.get(), va.get()]
    cur_w = va.get()
    ones = va.get(4, 4)
    for i in range(4):
        a.valu("v_mov_b32", ones[i], 0x3F803F80)
    F = []
    for s in range(2):
        F.append(dict(act=[va.get(4, 4) for _ in range(5)], st=va.get(4, 4), w=[va.get(4, 4) for _ in range(3)]))
    accq = [va.get(4, 4) for _ in range(4)]
    acck = [va.get(4, 4) for _ in range(5)]
    accv = [va.get(4, 4) for _ in range(5)]
    cs = [va.get(4, 4) for _ in range(3)]
    rs = [va.get(4, 4) for _ in range(2)]
    gr = [va.get(4, 4) for _ in range(2)]

    def reads(t):
        st, ks = t >> 1, t & 1
        f = F[t & 1]
        for mb in range(5):
            a.ds_read("ds_read_b128", f["act"][mb], cur_act[ks], mb * 2048)
        a.ds_read("ds_read_b128", f["st"], cur_st[ks], 0)
        for p in range(3):
            for hf in range(2):
                a.ds_read("ds_read_b64_tr_b16", f["w"][p][2 * hf:2 * hf + 2], cur_w, p * 8192 + (32 * ks + 4 * hf) * 128)

    def mfmas(t):
        f = F[t & 1]
        z = t == 0

        def m(D, A, B):
            a.mfma(MF32, D, A, B, 0 if z else D)

        for mb in range(5):
            m(acck[mb], f["w"][1], f["act"][mb])
            m(accv[mb], f["act"][mb], f["w"][2])
            if mb:
                m(accq[mb - 1], f["w"][0], f["act"][mb])
        m(cs[0], f["w"][0], ones)
        m(cs[1], f["w"][1], ones)
        m(cs[2], ones, f["w"][2])
        m(rs[0], ones, f["st"])
        m(gr[0], f["st"], f["st"])
        m(rs[1], ones, f["act"][4])
        m(gr[1], f["act"][4], f["act"][4])

    for t in range(16):
        st, ks = t >> 1, t & 1
        if ks == 0:
            base = (st % NS) * STG
            for i in range(2):
                a.valu("v_add_u32", cur_act[i], base, a_act[i])
                a.valu("v_add_u32", cur_st[i], base, a_st[i])
            a.valu("v_add_u32", cur_w, base, a_w)
            a.wait(lgkm=0)
            a.barrier()
        reads(t)
        if t:
            a.wait(lgkm=12)
            mfmas(t - 1)
    a.wait(lgkm=0)
    mfmas(15)

    m1, m2, m3 = S(62, 2), S(64, 2), S(66, 2)
    a.valu("v_and_b32", tmp, 3, lane)
    a.valu("v_cmp_eq_u32", m1, 1, tmp)
    a.valu("v_cmp_eq_u32", m2, 2, tmp)
    a.valu("v_cmp_eq_u32", m3, 3, tmp)
    spair = [va.get(2), va.get(2)]
    for i in range(2):
        mean, rr = spair[i][0], spair[i][1]
        d = va.get()
        a.valu("v_cndmask_b32", d, gr[i][0], gr[i][1], m1)
        a.valu("v_cndmask_b32", d, d, gr[i][2], m2)
        a.valu("v_cndmask_b32", d, d, gr[i][3], m3)
        a.valu("v_mul_f32", mean, f32(1.0 / 512), rs[i][0])
        a.valu("v_mul_f32", d, f32(1.0 / 512), d)
        a.valu("v_fma_f32", d, Neg(mean), mean, d)
        a.valu("v_max_f32", d, 0, d)
        bf16r(a, mean, tmp)
        bf16r(a, d, tmp)
        a.valu("v_add_f32", d, f32(1e-5), d)
        bf16r(a, d, tmp)
        a.valu("v_sqrt_f32", d, d)
        bf16r(a, d, tmp)
        a.valu("v_rcp_f32", rr, d)
    a_sw = va.get()
    a.salu("s_lshl_b32", s_t, S_WAVE, 7)
    a.valu("v_lshl_add_u32", a_sw, l15, 3, s_t)
    a.valu("v_add_u32", a_sw, STATS, a_sw)
    a.valu("v_lshlrev_b32", tmp2, 3, l15)
    a.valu("v_add_u32", tmp2, STATS + 64 * 8, tmp2)
    a.valu("v_lshrrev_b32", tmp, 2, l15)
    a.valu("v_cmp_eq_u32", VCC, g, tmp)
    a.salu("s_and_saveexec_b64", S(68, 2), VCC, extra_w=[EXEC], extra_r=[EXEC])
    a.ds_write("ds_write_b64", a_sw, spair[0])
    a.ds_write("ds_write_b64", tmp2, spair[1])
    a.salu("s_mov_b64", EXEC, S(68, 2))
    a.wait(lgkm=0)
    a.barrier()
    a_s1, a_s2 = va.get(), va.get()
    a.valu("v_lshlrev_b32", a_s1, 3, l15)
    a.valu("v_add_u32", a_s1, STATS, a_s1)
    a.valu("v_lshlrev_b32", a_s2, 5, g)
    a.valu("v_add_u32", a_s2, STATS, a_s2)
    stq = [F[0]["act"][mb][0:2] for mb in range(5)]
    stv = [(F[1]["act"][mb], F[0]["w"][mb] if mb < 3 else (F[0]["st"] if mb == 3 else F[1]["st"])) for mb in range(5)]
    for mb in range(5):
        a.ds_read("ds_read_b64", stq[mb], a_s1, mb * 128)
        a.ds_read("ds_read_b128", stv[mb][0], a_s2, mb * 128)
        a.ds_read("ds_read_b128", stv[mb][1], a_s2, mb * 128 + 16)
    bp = [va.get() for _ in range(4)]
    bc = [va.get() for _ in range(4)]
    vneg = va.get()
    a.valu("v_mov_b32", vneg, f32(NEG))
    a.valu("v_lshlrev_b32", tmp2, 2, g)
    a.valu("v_sub_u32", tmp2, l15, tmp2)
    for r in range(4):
        for (b, add) in ((bp[r], 16 - r), (bc[r], -r)):
            a.valu("v_add_u32", tmp, add, tmp2)
            a.valu("v_and_b32", tmp, 0xFFFFFFF1, tmp)
            a.valu("v_cmp_eq_u32", VCC, 0, tmp)
            a.valu("v_cndmask_b32", b, vneg, 0, VCC)
    s_first = S(70)
    a.salu("s_cmp_eq_u32", None, s_rb, 0)
    a.salu("s_cselect_b32", s_first, f32(NEG), 0)
    s_c = S(71)
    a.salu("s_mov_b32", s_c, f32(0.25 * LOG2E))
    a_o = va.get()
    a.salu("s_lshl_b32", s_t, s_rb, 6)
    a.valu("v_add_u32", a_o, s_t, l15)
    a.valu("v_lshlrev_b32", a_o, 10, a_o)
    a.salu("s_lshl_b32", s_t, s_cb, 2)
    a.salu("s_add_u32", s_t, s_t, S_WAVE)
    a.salu("s_lshl_b32", s_t, s_t, 5)
    a.valu("v_add_u32", a_o, s_t, a_o)
    a.valu("v_lshl_add_u32", a_o, g, 3, a_o)
    a.wait(lgkm=0)
    qp = [va.get(2) for _ in range(4)]
    kp = [va.get(2) for _ in range(5)]
    vp = [va.get(2) for _ in range(5)]
    for mb in range(5):
        for (acc, csr, dstp) in ((acck[mb], cs[1], kp[mb]),) + (((accq[mb - 1], cs[0], qp[mb - 1]),) if mb else ()):
            for r in range(4):
                a.valu("v_fma_f32", acc[r], Neg(stq[mb][0]), csr[r], acc[r])
                a.valu("v_mul_f32", acc[r], acc[r], stq[mb][1])
            a.valu("v_cvt_pk_bf16_f32", dstp[0], acc[0], acc[1])
            a.valu("v_cvt_pk_bf16_f32", dstp[1], acc[2], acc[3])
        acc = accv[mb]
        for r in range(4):
            sv = stv[mb][r >> 1]
            a.valu("v_fma_f32", acc[r], Neg(sv[(r & 1) * 2]), cs[2][r], acc[r])
            a.valu("v_mul_f32", acc[r], acc[r], sv[(r & 1) * 2 + 1])
        a.valu("v_cvt_pk_bf16_f32", vp[mb][0], acc[0], acc[1])
        a.valu("v_cvt_pk_bf16_f32", vp[mb][1], acc[2], acc[3])
    sp = [accq[i] for i in range(4)]
    sc = [acck[i] for i in range(4)]
    ob = [accv[i] for i in range(4)]
    for i in range(1, 5):
        a.mfma(MF16, sp[i - 1], kp[i - 1], qp[i - 1], 0)
        a.mfma(MF16, sc[i - 1], kp[i], qp[i - 1], 0)
    mx, mx2, sm, sm2 = va.get(), va.get(), va.get(), va.get()
    s_so = S(72)
    for i in range(1, 5):
        u = [sp[i - 1][r] for r in range(4)] + [sc[i - 1][r] for r in range(4)]
        bb = bp + bc
        for j in range(8):
            a.valu("v_fma_f32", u[j], u[j], s_c, bb[j])
        if i == 1:
            for j in range(4):
                a.valu("v_add_f32", u[j], s_first, u[j])
        a.valu("v_max3_f32", mx, u[0], u[1], u[2])
        a.valu("v_max3_f32", mx, mx, u[3], u[4])
        a.valu("v_max3_f32", mx, mx, u[5], u[6])
        a.valu("v_max_f32", mx, mx, u[7])
        a.valu("v_mov_b32", mx2, mx)
        a.valu("v_permlane32_swap_b32", mx, mx2)
        a.valu("v_max_f32", mx, mx, mx2)
        a.valu("v_mov_b32", mx2, mx)
        a.valu("v_permlane16_swap_b32", mx, mx2)
        a.valu("v_max_f32", mx, mx, mx2)
        for j in range(8):
            a.valu("v_sub_f32", u[j], u[j], mx)
            a.valu("v_exp_f32", u[j], u[j])
        a.valu("v_add_f32", sm, u[0], u[1])
        for j in range(2, 8):
            a.valu("v_add_f32", sm, sm, u[j])
        a.valu("v_mov_b32", sm2, sm)
        a.valu("v_permlane32_swap_b32", sm, sm2)
        a.valu("v_add_f32", sm, sm, sm2)
        a.valu("v_mov_b32", sm2, sm)
        a.valu("v_permlane16_swap_b32", sm, sm2)
        a.valu("v_add_f32", sm, sm, sm2)
        a.valu("v_rcp_f32", sm, sm)
        for j in range(8):
            a.valu("v_mul_f32", u[j], u[j], sm)
        pp, pc = sp[i - 1][0:2], sc[i - 1][0:2]
        a.valu("v_cvt_pk_bf16_f32", pp[0], u[0], u[1])
        a.valu("v_cvt_pk_bf16_f32", pp[1], u[2], u[3])
        a.valu("v_cvt_pk_bf16_f32", pc[0], u[4], u[5])
        a.valu("v_cvt_pk_bf16_f32", pc[1], u[6], u[7])
        a.mfma(MF16, ob[i - 1], vp[i - 1], pp, 0)
        a.mfma(MF16, ob[i - 1], vp[i], pc, ob[i - 1])
    for i in range(1, 5):
        o = ob[i - 1]
        a.valu("v_cvt_pk_bf16_f32", o[0], o[0], o[1])
        a.valu("v_cvt_pk_bf16_f32", o[1], o[2], o[3])
        a.salu("s_mov_b32", s_so, (i - 1) * 16384)
        a.bstore("buffer_store_dwordx2", o[0:2], a_o, SRD_O, s_so)
    a.endpgm()

    a.label(f"L_{name}_loader")
    s_lw = S(58)
    a.salu("s_sub_u32", s_lw, S_WAVE, 4)
    l3, l7b, c16, t1 = V(3), V(4), V(5), V(6)
    v_act = [V(7), V(8), V(9)]
    v_w = [V(10), V(11)]
    a.valu("v_lshrrev_b32", l3, 3, lane)
    a.valu("v_and_b32", l7b, 7, lane)
    a.valu("v_xor_b32", c16, l7b, l3)
    a.valu("v_lshlrev_b32", c16, 4, c16)
    s_am0 = [S(60), S(61), S(62)]
    for t in range(3):
        a.salu("s_add_u32", s_am0[t], s_lw, 4 * t)
        a.salu("s_min_u32", s_am0[t], s_am0[t], 9)
        a.salu("s_lshl_b32", S(63), s_rb, 6)
        a.salu("s_lshl_b32", S(64), s_am0[t], 3)
        a.salu("s_add_u32", S(63), S(63), S(64))
        a.salu("s_sub_u32", S(63), S(63), 16)
        a.valu("v_add_u32", t1, S(63), l3)
        a.valu("v_max_i32", t1, 0, t1)
        a.valu("v_lshl_add_u32", v_act[t], t1, 10, c16)
        a.salu("s_lshl_b32", s_am0[t], s_am0[t], 10)
    s_wm0 = S(65)
    a.salu("s_lshl_b32", s_wm0, s_lw, 11)
    a.salu("s_mov_b32", S(66), 3072)
    for jj in range(2):
        a.valu("v_and_b32", t1, 2, l3)
        if jj:
            a.valu("v_or_b32", t1, 4, t1)
        a.valu("v_xor_b32", t1, t1, l7b)
        a.valu("v_lshlrev_b32", t1, 4, t1)
        a.salu("s_lshl_b32", S(63), s_lw, 4)
        a.salu("s_add_u32", S(63), S(63), 8 * jj)
        a.valu("v_add_u32", v_w[jj], S(63), l3)
        a.valu("v_mul_lo_u32", v_w[jj], v_w[jj], S(66))
        a.valu("v_add_u32", v_w[jj], v_w[jj], t1)
        a.salu("s_lshl_b32", S(63), s_cb, 7)
        a.valu("v_add_u32", v_w[jj], S(63), v_w[jj])
    s_so = S(67)

    def issue(st):
        base = (st % NS) * STG
        for t in range(3):
            a.salu("s_add_u32", M0, s_am0[t], base)
            a.salu("s_mov_b32", s_so, st * 128)
            a.dma(v_act[t], SRD_A, s_so)
        for p in range(3):
            for jj in range(2):
                a.salu("s_add_u32", M0, s_wm0, base + WOFF + p * 8192 + jj * 1024)
                a.salu("s_mov_b32", s_so, st * 64 * 3072 + p * 1024)
                a.dma(v_w[jj], SRD_W, s_so)

    loader_loop(a, 8, NS, 9, issue)
    epilogue_end(a, name)
    lds = STATS + 80 * 8
    return a, name, lds


def k24(which):
    name = NAME + f"_k{which}_kernel"
    a = Asm()
    if which == 2:
        K, ROWB = 512, 1024
        srds = [(SRD_A, P_WS, 2048 * 1024, WS_O), (SRD_W, P_WO, 512 * 1024, 0), (SRD_X1, P_X, 2048 * 1024, 0),
                (SRD_O, P_WS, 2048 * 1024, WS_H)]
    else:
        K, ROWB = 1792, 3584
        srds = [(SRD_A, P_WS, 2048 * 3584, WS_H1), (SRD_W, P_W2, 1792 * 1024, 0), (SRD_X1, P_WS, 2048 * 1024, WS_H),
                (SRD_X2, P_B2, 1024, 0), (SRD_O, P_OUT, 2048 * 1024, 0)]
    prologue(a, name, srds)
    NST = K // 64
    STG, WOFF, NS = 16384, 8192, 8
    s_rb, s_cb, s_t = S(56), S(57), S(58)
    a.salu("s_and_b32", s_t, S(2), 7)
    a.salu("s_lshl_b32", s_rb, s_t, 2)
    a.salu("s_lshr_b32", S(59), S(2), 3)
    a.salu("s_and_b32", S(60), S(59), 3)
    a.salu("s_add_u32", s_rb, s_rb, S(60))
    a.salu("s_lshr_b32", s_cb, S(59), 2)
    a.salu("s_cmp_ge_u32", None, S_WAVE, 4)
    a.branch("s_cbranch_scc1", f"L_{name}_loader")
    lane = V(1)
    va = VAlloc(3)
    l15, g, tmp, tmp2, l7 = [va.get() for _ in range(5)]
    a.valu("v_and_b32", l15, 15, lane)
    a.valu("v_lshrrev_b32", g, 4, lane)
    a.valu("v_and_b32", l7, 7, lane)
    s_mh, s_nh = S(59), S(60)
    a.salu("s_and_b32", s_mh, S_WAVE, 1)
    a.salu("s_lshr_b32", s_nh, S_WAVE, 1)
    a_o = va.get()
    a.salu("s_lshl_b32", s_t, s_rb, 6)
    a.salu("s_lshl_b32", S(61), s_mh, 5)
    a.salu("s_add_u32", s_t, s_t, S(61))
    a.valu("v_add_u32", a_o, s_t, l15)
    a.valu("v_lshlrev_b32", a_o, 10, a_o)
    a.salu("s_lshl_b32", s_t, s_cb, 7)
    a.salu("s_lshl_b32", S(61), s_nh, 6)
    a.salu("s_add_u32", s_t, s_t, S(61))
    a.valu("v_lshl_add_u32", tmp, g, 3, s_t)
    a.valu("v_add_u32", a_o, a_o, tmp)
    xr = [[va.get(2) for _ in range(2)] for _ in range(2)]
    s_16r = S(62)
    a.salu("s_mov_b32", s_16r, 16 * 1024)
    for nf in range(2):
        for mb in range(2):
            a.bload("buffer_load_dwordx2", xr[nf][mb], a_o, SRD_X1, s_16r if mb else 0, offset=nf * 32)
    if which == 4:
        br = [va.get(2) for _ in range(2)]
        for nf in range(2):
            a.bload("buffer_load_dwordx2", br[nf], tmp, SRD_X2, 0, offset=nf * 32)
    a_act = [[va.get(), va.get()], [va.get(), va.get()]]
    a_w = [[va.get(), va.get()], [va.get(), va.get()]]
    for ks in range(2):
        a.valu("v_add_u32", tmp, 4 * ks, g)
        a.valu("v_xor_b32", tmp, tmp, l7)
        a.valu("v_lshlrev_b32", tmp, 4, tmp)
        a.valu("v_lshl_add_u32", tmp, l15, 7, tmp)
        a.salu("s_lshl_b32", s_t, s_mh, 12)
        a.valu("v_add_u32", a_act[0][ks], s_t, tmp)
        a.valu("v_add_u32", a_act[1][ks], 65536, a_act[0][ks])
    rp, c = va.get(), va.get()
    a.valu("v_lshrrev_b32", rp, 2, l15)
    a.valu("v_and_b32", c, 3, l15)
    for nf in range(2):
        a.valu("v_lshrrev_b32", tmp, 1, c)
        a.salu("s_lshl_b32", s_t, s_nh, 2)
        a.salu("s_add_u32", s_t, s_t, 2 * nf)
        a.valu("v_add_u32", tmp, s_t, tmp)
        a.valu("v_and_b32", tmp2, 2, rp)
        a.valu("v_xor_b32", tmp, tmp, tmp2)
        a.valu("v_and_b32", tmp2, 1, g)
        a.valu("v_lshlrev_b32", tmp2, 2, tmp2)
        a.valu("v_xor_b32", tmp, tmp, tmp2)
        a.valu("v_lshlrev_b32", tmp, 4, tmp)
        a.valu("v_and_b32", tmp2, 1, c)
        a.valu("v_lshl_add_u32", tmp, tmp2, 3, tmp)
        a.valu("v_lshl_add_u32", tmp2, g, 3, rp)
        a.valu("v_lshl_add_u32", tmp, tmp2, 7, tmp)
        a.valu("v_add_u32", a_w[0][nf], WOFF, tmp)
        a.valu("v_add_u32", a_w[1][nf], 65536, a_w[0][nf])
    F = [dict(act=[va.get(4, 4) for _ in range(2)], w=[va.get(4, 4) for _ in range(2)]) for _ in range(2)]
    acc = [[va.get(4, 4) for _ in range(2)] for _ in range(2)]

    def reads(t):
        st, ks = t >> 1, t & 1
        slot = st % NS
        hi, base = slot // 4, (slot % 4) * STG
        f = F[t & 1]
        for mb in range(2):
            a.ds_read("ds_read_b128", f["act"][mb], a_act[hi][ks], base + mb * 2048)
        for nf in range(2):
            for hf in range(2):
                a.ds_read("ds_read_b64_tr_b16", f["w"][nf][2 * hf:2 * hf + 2], a_w[hi][nf], base + (32 * ks + 4 * hf) * 128)

    def mfmas(t):
        f = F[t & 1]
        for nf in range(2):
            for mb in range(2):
                a.mfma(MF32, acc[nf][mb], f["w"][nf], f["act"][mb], 0 if t == 0 else acc[nf][mb])

    for t in range(2 * NST):
        if (t & 1) == 0:
            a.wait(lgkm=0)
            a.barrier()
        reads(t)
        if t:
            a.wait(lgkm=6)
            mfmas(t - 1)
    a.wait(lgkm=0)
    mfmas(2 * NST - 1)
    a.wait(vm=0)
    x0, x1 = va.get(), va.get()
    for nf in range(2):
        for mb in range(2):
            ac = acc[nf][mb]
            for h in range(2):
                a.valu("v_cvt_pk_bf16_f32", tmp, ac[2 * h], ac[2 * h + 1])
                a.valu("v_lshlrev_b32", ac[2 * h], 16, tmp)
                a.valu("v_and_b32", ac[2 * h + 1], 0xFFFF0000, tmp)
                if which == 4:
                    a.valu("v_lshlrev_b32", x0, 16, br[nf][h])
                    a.valu("v_and_b32", x1, 0xFFFF0000, br[nf][h])
                    a.valu("v_add_f32", ac[2 * h], ac[2 * h], x0)
                    a.valu("v_add_f32", ac[2 * h + 1], ac[2 * h + 1], x1)
                    a.valu("v_cvt_pk_bf16_f32", tmp, ac[2 * h], ac[2 * h + 1])
                    a.valu("v_lshlrev_b32", ac[2 * h], 16, tmp)
                    a.valu("v_and_b32", ac[2 * h + 1], 0xFFFF0000, tmp)
                a.valu("v_lshlrev_b32", x0, 16, xr[nf][mb][h])
                a.valu("v_and_b32", x1, 0xFFFF0000, xr[nf][mb][h])
                a.valu("v_add_f32", ac[2 * h], ac[2 * h], x0)
                a.valu("v_add_f32", ac[2 * h + 1], ac[2 * h + 1], x1)
                a.valu("v_cvt_pk_bf16_f32", xr[nf][mb][h], ac[2 * h], ac[2 * h + 1])
            a.bstore("buffer_store_dwordx2", xr[nf][mb], a_o, SRD_O, s_16r if mb else 0, offset=nf * 32)
    a.endpgm()

    a.label(f"L_{name}_loader")
    s_lw = S(58)
    a.salu("s_sub_u32", s_lw, S_WAVE, 4)
    l3, l7b, c16, t1 = V(3), V(4), V(5), V(6)
    v_act = V(7)
    v_w = [V(8), V(9)]
    a.valu("v_lshrrev_b32", l3, 3, lane)
    a.valu("v_and_b32", l7b, 7, lane)
    a.valu("v_xor_b32", c16, l7b, l3)
    a.valu("v_lshlrev_b32", c16, 4, c16)
    a.salu("s_lshl_b32", S(63), s_rb, 6)
    a.salu("s_lshl_b32", S(64), s_lw, 4)
    a.salu("s_add_u32", S(63), S(63), S(64))
    a.valu("v_add_u32", t1, S(63), l3)
    a.salu("s_mov_b32", S(66), ROWB)
    a.valu("v_mul_lo_u32", t1, t1, S(66))
    a.valu("v_add_u32", v_act, t1, c16)
    s_m0 = S(65)
    a.salu("s_lshl_b32", s_m0, s_lw, 11)
    for jj in range(2):
        a.valu("v_and_b32", t1, 2, l3)
        if jj:
            a.valu("v_or_b32", t1, 4, t1)
        a.valu("v_xor_b32", t1, t1, l7b)
        a.valu("v_lshlrev_b32", t1, 4, t1)
        a.salu("s_lshl_b32", S(63), s_lw, 4)
        a.salu("s_add_u32", S(63), S(63), 8 * jj)
        a.valu("v_add_u32", v_w[jj], S(63), l3)
        a.valu("v_lshl_add_u32", v_w[jj], v_w[jj], 10, t1)
        a.salu("s_lshl_b32", S(63), s_cb, 7)
        a.valu("v_add_u32", v_w[jj], S(63), v_w[jj])
    s_so = S(67)

    def issue(st):
        base = (st % NS) * STG
        for jj in range(2):
            a.salu("s_add_u32", M0, s_m0, base + jj * 1024)
            a.salu("s_mov_b32", s_so, st * 128 + jj * 8 * ROWB)
            a.dma(v_act, SRD_A, s_so)
        for jj in range(2):
            a.salu("s_add_u32", M0, s_m0, base + WOFF + jj * 1024)
            a.salu("s_mov_b32", s_so, st * 64 * 1024)
            a.dma(v_w[jj], SRD_W, s_so)

    loader_loop(a, NST, NS, 4, issue)
    epilogue_end(a, name)
    return a, name, NS * STG


def k3():
    name = NAME + "_k3_kernel"
    a = Asm()
    prologue(a, name, [(SRD_A, P_WS, 2048 * 1024, WS_H), (SRD_W, P_W1, 512 * 3584, 0), (SRD_X1, P_B1, 3584, 0),
                       (SRD_O, P_WS, 2048 * 3584, WS_H1)])
    STG, WOFF, NS = 32768, 16384, 4
    CS = NS * STG
    s_rb, s_cb, s_t = S(56), S(57), S(58)
    a.salu("s_and_b32", s_t, S(2), 7)
    a.salu("s_lshr_b32", s_rb, s_t, 1)
    a.salu("s_lshl_b32", s_rb, s_rb, 2)
    a.salu("s_lshr_b32", S(59), S(2), 3)
    a.salu("s_and_b32", S(60), S(59), 3)
    a.salu("s_add_u32", s_rb, s_rb, S(60))
    a.salu("s_and_b32", s_cb, s_t, 1)
    a.salu("s_lshl_b32", s_cb, s_cb, 3)
    a.salu("s_lshr_b32", S(59), S(59), 2)
    a.salu("s_add_u32", s_cb, s_cb, S(59))
    a.salu("s_cmp_ge_u32", None, S_WAVE, 4)
    a.branch("s_cbranch_scc1", f"L_{name}_loader")
    lane = V(1)
    va = VAlloc(3)
    l15, g, tmp, tmp2, l7 = [va.get() for _ in range(5)]
    a.valu("v_and_b32", l15, 15, lane)
    a.valu("v_lshrrev_b32", g, 4, lane)
    a.valu("v_and_b32", l7, 7, lane)
    a.salu("s_mul_i32", s_t, s_cb, 224)
    a.valu("v_lshl_add_u32", tmp, g, 3, s_t)
    br = [va.get(2) for _ in range(7)]
    for nf in range(7):
        a.bload("buffer_load_dwordx2", br[nf], tmp, SRD_X1, 0, offset=nf * 32)
    a_o = va.get()
    a.salu("s_lshl_b32", S(59), s_rb, 7)
    a.salu("s_lshl_b32", S(60), S_WAVE, 5)
    a.salu("s_add_u32", S(59), S(59), S(60))
    a.valu("v_add_u32", a_o, S(59), l15)
    a.salu("s_mov_b32", S(60), 3584)
    a.valu("v_mul_lo_u32", a_o, a_o, S(60))
    a.valu("v_add_u32", a_o, a_o, tmp)
    a_act = [[va.get(), va.get()], [va.get(), va.get()]]
    for ks in range(2):
        a.valu("v_add_u32", tmp, 4 * ks, g)
        a.valu("v_xor_b32", tmp, tmp, l7)
        a.valu("v_lshlrev_b32", tmp, 4, tmp)
        a.valu("v_lshl_add_u32", tmp, l15, 7, tmp)
        a.salu("s_lshl_b32", s_t, S_WAVE, 12)
        a.valu("v_add_u32", a_act[0][ks], s_t, tmp)
        a.valu("v_add_u32", a_act[1][ks], 65536, a_act[0][ks])
    rp, c, fk, rowb = va.get(), va.get(), va.get(), va.get()
    a.valu("v_lshrrev_b32", rp, 2, l15)
    a.valu("v_and_b32", c, 3, l15)
    a.valu("v_and_b32", fk, 1, g)
    a.valu("v_lshlrev_b32", fk, 3, fk)
    a.valu("v_lshl_add_u32", fk, rp, 1, fk)
    a.valu("v_lshl_add_u32", rowb, g, 3, rp)
    a.valu("v_lshlrev_b32", rowb, 8, rowb)
    a.valu("v_and_b32", tmp, 1, c)
    a.valu("v_lshl_add_u32", rowb, tmp, 3, rowb)
    a.valu("v_add_u32", rowb, WOFF, rowb)
    a_w = [[va.get() for _ in range(9)] for _ in range(2)]
    s_c0, s_c1 = S(59), S(60)
    a.salu("s_lshl_b32", s_c0, S_WAVE, 1)
    a.salu("s_add_u32", s_c1, S_WAVE, 4)
    a.salu("s_min_u32", s_c1, s_c1, 6)
    a.salu("s_lshl_b32", s_c1, s_c1, 1)
    for nf in range(9):
        a.valu("v_lshrrev_b32", tmp, 1, c)
        if nf < 7:
            a.valu("v_add_u32", tmp, 2 * nf, tmp)
        else:
            a.valu("v_add_u32", tmp, (s_c0, s_c1)[nf - 7], tmp)
        a.valu("v_xor_b32", tmp, tmp, fk)
        a.valu("v_lshl_add_u32", a_w[0][nf], tmp, 4, rowb)
        a.valu("v_add_u32", a_w[1][nf], 65536, a_w[0][nf])
    ones = va.get(4, 4)
    for i in range(4):
        a.valu("v_mov_b32", ones[i], 0x3F803F80)
    F = [dict(act=[va.get(4, 4) for _ in range(2)], w=[va.get(4, 4) for _ in range(9)]) for _ in range(2)]
    acc = [[va.get(4, 4) for _ in range(2)] for _ in range(7)]
    csa = [va.get(4, 4) for _ in range(2)]
    rs = [va.get(4, 4) for _ in range(2)]
    gr = [va.get(4, 4) for _ in range(2)]

    def reads(b):
        t, half = b >> 1, b & 1
        st, ks = t >> 1, t & 1
        slot = st % NS
        hi, base = slot // 2, (slot % 2) * STG
        f = F[t & 1]
        if half == 0:
            for mb in range(2):
                a.ds_read("ds_read_b128", f["act"][mb], a_act[hi][ks], base + mb * 2048)
        for nf in (range(4) if half == 0 else range(4, 9)):
            for hf in range(2):
                a.ds_read("ds_read_b64_tr_b16", f["w"][nf][2 * hf:2 * hf + 2], a_w[hi][nf], base + (32 * ks + 4 * hf) * 256)

    def mfmas(b):
        t, half = b >> 1, b & 1
        f = F[t & 1]
        z = t == 0

        def m(D, A, B):
            a.mfma(MF32, D, A, B, 0 if z else D)

        for nf in (range(4) if half == 0 else range(4, 7)):
            for mb in range(2):
                m(acc[nf][mb], f["w"][nf], f["act"][mb])
        if half == 0:
            for mb in range(2):
                m(rs[mb], ones, f["act"][mb])
                m(gr[mb], f["act"][mb], f["act"][mb])
        else:
            m(csa[0], f["w"][7], ones)
            m(csa[1], f["w"][8], ones)

    NB = 32
    for b in range(NB):
        if (b & 3) == 0:
            a.wait(lgkm=0)
            a.barrier()
        reads(b)
        if b:
            a.wait(lgkm=10)
            mfmas(b - 1)
    a.wait(lgkm=0)
    mfmas(NB - 1)
    a.valu("v_lshlrev_b32", tmp, 4, g)
    a.valu("v_add_u32", tmp, CS, tmp)
    a.salu("s_lshl_b32", S(61), s_c0, 5)
    a.valu("v_add_u32", tmp2, S(61), tmp)
    a.salu("s_lshl_b32", S(61), s_c1, 5)
    a.valu("v_add_u32", tmp, S(61), tmp)
    a.valu("v_cmp_eq_u32", VCC, 0, l15)
    a.salu("s_and_saveexec_b64", S(68, 2), VCC, extra_w=[EXEC], extra_r=[EXEC])
    a.ds_write("ds_write_b128", tmp2, csa[0])
    a.ds_write("ds_write_b128", tmp, csa[1])
    a.salu("s_mov_b64", EXEC, S(68, 2))
    m1, m2, m3 = S(62, 2), S(64, 2), S(66, 2)
    a.valu("v_and_b32", tmp, 3, lane)
    a.valu("v_cmp_eq_u32", m1, 1, tmp)
    a.valu("v_cmp_eq_u32", m2, 2, tmp)
    a.valu("v_cmp_eq_u32", m3, 3, tmp)
    bsrc = va.get()
    a.valu("v_lshrrev_b32", tmp, 2, l15)
    a.valu("v_lshl_add_u32", tmp, tmp, 4, l15)
    a.valu("v_lshlrev_b32", bsrc, 2, tmp)
    dg = [va.get(), va.get()]
    for mb in range(2):
        a.valu("v_cndmask_b32", tmp, gr[mb][0], gr[mb][1], m1)
        a.valu("v_cndmask_b32", tmp, tmp, gr[mb][2], m2)
        a.valu("v_cndmask_b32", tmp, tmp, gr[mb][3], m3)
        c_ = a._mk("ds_read", [dg[mb]], [bsrc, tmp])
        a._push(c_, f"ds_bpermute_b32 {dg[mb]}, {bsrc}, {tmp}")
    a.wait(lgkm=0)
    a.barrier()
    csr = [F[0]["w"][i] for i in range(7)]
    a.valu("v_lshlrev_b32", tmp2, 4, g)
    a.valu("v_add_u32", tmp2, CS, tmp2)
    for nf in range(7):
        a.ds_read("ds_read_b128", csr[nf], tmp2, nf * 64)
    meff = [va.get(), va.get()]
    reff = [va.get(), va.get()]
    mean, mm1, s1, t3 = va.get(), va.get(), va.get(), va.get()
    for mb in range(2):
        d = dg[mb]
        a.valu("v_mul_f32", mean, f32(1.0 / 512), rs[mb][0])
        a.valu("v_mul_f32", d, f32(1.0 / 512), d)
        a.valu("v_fma_f32", d, Neg(mean), mean, d)
        a.valu("v_max_f32", d, 0, d)
        a.valu("v_mov_b32", mm1, mean)
        bf16r(a, mm1, tmp)
        a.valu("v_mov_b32", s1, d)
        bf16r(a, s1, tmp)
        a.valu("v_add_f32", s1, f32(1e-5), s1)
        bf16r(a, s1, tmp)
        a.valu("v_sqrt_f32", s1, s1)
        bf16r(a, s1, tmp)
        a.valu("v_rcp_f32", t3, s1)
        a.valu("v_sub_f32", mean, mean, mm1)
        a.valu("v_mul_f32", mean, mean, t3)
        bf16r(a, mean, tmp)
        a.valu("v_mul_f32", d, d, t3)
        a.valu("v_mul_f32", d, d, t3)
        bf16r(a, d, tmp)
        a.valu("v_add_f32", d, f32(1e-5), d)
        bf16r(a, d, tmp)
        a.valu("v_sqrt_f32", d, d)
        bf16r(a, d, tmp)
        a.valu("v_fma_f32", meff[mb], mean, s1, mm1)
        a.valu("v_mul_f32", d, d, s1)
        a.valu("v_rcp_f32", reff[mb], d)
    kk = 2.0 * math.sqrt(2.0 / math.pi) * LOG2E
    vc1 = va.get()
    s_c2 = S(70)
    a.valu("v_mov_b32", vc1, f32(-kk))
    a.salu("s_mov_b32", s_c2, f32(-kk * 0.044715))
    s_16r = S(71)
    a.salu("s_mov_b32", s_16r, 16 * 3584)
    a.wait(vm=0, lgkm=0)
    b0, b1_, t2 = va.get(), va.get(), va.get()
    outp = [va.get(2), va.get(2)]
    k = 0
    for nf in range(7):
        for mb in range(2):
            ac = acc[nf][mb]
            for r in range(4):
                a.valu("v_fma_f32", ac[r], Neg(meff[mb]), csr[nf][r], ac[r])
                a.valu("v_mul_f32", ac[r], ac[r], reff[mb])
            op = outp[k & 1]
            k += 1
            for h in range(2):
                a.valu("v_cvt_pk_bf16_f32", tmp, ac[2 * h], ac[2 * h + 1])
                a.valu("v_lshlrev_b32", ac[2 * h], 16, tmp)
                a.valu("v_and_b32", ac[2 * h + 1], 0xFFFF0000, tmp)
                a.valu("v_lshlrev_b32", b0, 16, br[nf][h])
                a.valu("v_and_b32", b1_, 0xFFFF0000, br[nf][h])
                a.valu("v_add_f32", ac[2 * h], ac[2 * h], b0)
                a.valu("v_add_f32", ac[2 * h + 1], ac[2 * h + 1], b1_)
                a.valu("v_cvt_pk_bf16_f32", tmp, ac[2 * h], ac[2 * h + 1])
                a.valu("v_lshlrev_b32", ac[2 * h], 16, tmp)
                a.valu("v_and_b32", ac[2 * h + 1], 0xFFFF0000, tmp)
                for e in range(2):
                    x = ac[2 * h + e]
                    tt = (b0, b1_)[e]
                    a.valu("v_mul_f32", tt, x, x)
                    a.valu("v_fma_f32", tt, tt, s_c2, vc1)
                    a.valu("v_mul_f32", tt, tt, x)
                    a.valu("v_exp_f32", tt, tt)
                    a.valu("v_add_f32", tt, 1.0, tt)
                    a.valu("v_rcp_f32", tt, tt)
                    a.valu("v_mul_f32", x, x, tt)
                a.valu("v_cvt_pk_bf16_f32", op[h], ac[2 * h], ac[2 * h + 1])
            a.bstore("buffer_store_dwordx2", op, a_o, SRD_O, s_16r if mb else 0, offset=nf * 32)
    a.endpgm()

    a.label(f"L_{name}_loader")
    s_lw = S(58)
    a.salu("s_sub_u32", s_lw, S_WAVE, 4)
    l3, l7b, c16, t1, t2_ = V(3), V(4), V(5), V(6), V(10)
    v_act = V(7)
    v_w = [V(8), V(9)]
    a.valu("v_lshrrev_b32", l3, 3, lane)
    a.valu("v_and_b32", l7b, 7, lane)
    a.valu("v_xor_b32", c16, l7b, l3)
    a.valu("v_lshlrev_b32", c16, 4, c16)
    a.salu("s_lshl_b32", S(63), s_rb, 7)
    a.salu("s_lshl_b32", S(64), s_lw, 5)
    a.salu("s_add_u32", S(63), S(63), S(64))
    a.valu("v_add_u32", t1, S(63), l3)
    a.valu("v_lshl_add_u32", v_act, t1, 10, c16)
    s_m0 = S(65)
    a.salu("s_lshl_b32", s_m0, s_lw, 12)
    a.salu("s_mov_b32", S(66), 3584)
    for hb in range(2):
        a.valu("v_lshrrev_b32", t1, 4, lane)
        a.valu("v_lshlrev_b32", t2_, 1, t1)
        if hb:
            a.valu("v_or_b32", t2_, 8, t2_)
        a.valu("v_and_b32", c16, 15, lane)
        a.valu("v_xor_b32", t2_, t2_, c16)
        a.valu("v_min_u32", t2_, 13, t2_)
        a.valu("v_lshlrev_b32", t2_, 4, t2_)
        a.salu("s_lshl_b32", S(63), s_lw, 4)
        a.valu("v_add_u32", t1, S(63), t1)
        a.valu("v_mul_lo_u32", t1, t1, S(66))
        a.valu("v_add_u32", t1, t1, t2_)
        a.salu("s_mul_i32", S(63), s_cb, 224)
        a.valu("v_add_u32", v_w[hb], S(63), t1)
    s_so = S(67)

    def issue(st):
        base = (st % NS) * STG
        for i in range(4):
            a.salu("s_add_u32", M0, s_m0, base + i * 1024)
            a.salu("s_mov_b32", s_so, st * 128 + i * 8 * 1024)
            a.dma(v_act, SRD_A, s_so)
        for i in range(4):
            a.salu("s_add_u32", M0, s_m0, base + WOFF + i * 1024)
            a.salu("s_mov_b32", s_so, (st * 64 + 4 * i) * 3584)
            a.dma(v_w[i >> 1], SRD_W, s_so)

    loader_loop(a, 8, NS, 8, issue)
    epilogue_end(a, name)
    return a, name, CS + 112 * 4


HEADER = """; Kernarg layout for this problem (88 bytes, ptrs only, base s[0:1]):
;  k4: out = h + (h1@w2 + b2)
"""


def main():
    ks = [k1(), k24(2), k3(), k24(4)]
    out = HEADER
    for a, name, lds in ks:
        out += f"; @launch kernel={name} grid=(256,1,1) block=(512,1,1) lds={lds}\n"
    out += '.amdgcn_target "amdgcn-amd-amdhsa--gfx950"\n.text\n'
    for a, name, lds in ks:
        out += "\n".join(a.lines) + "\n"
        out += kd(name, a.nv, a.ns)
    path = os.path.join(os.path.dirname(os.path.abspath(__file__)), "..", "cdna_kernels", NAME + ".s")
    open(path, "w").write(out)
    for a, name, lds in ks:
        print(name, "vgpr", a.nv, "sgpr", a.ns, "lds", lds, "lines", len(a.lines))


if __name__ == "__main__":
    main()
```
